```python
import torch

def _softmax(x, axis=-1):
    return torch.softmax(x, dim=axis)
def _gelu(x):
    return torch.nn.functional.gelu(x, approximate="tanh")
def _silu(x):
    return torch.nn.functional.silu(x)
def _sigmoid(x):
    return torch.sigmoid(x)
def _layernorm(x, axis=-1, eps=1e-5):
    m = x.mean(dim=axis, keepdim=True)
    v = x.var(dim=axis, keepdim=True, unbiased=False)
    return (x - m) / torch.sqrt(v + eps)
def _scatter_add(tgt, idx, src, axis=0):
    return tgt.clone().index_add_(axis, idx, src)
def _segment_sum(src, seg, n):
    out = torch.zeros((n,) + src.shape[1:], dtype=src.dtype)
    return out.index_add_(0, seg, src)
def _pad(x, pw):
    flat = tuple(v for pair in reversed(pw) for v in pair)
    return torch.nn.functional.pad(x, flat)

kernel_name = 'standalone__linear_kernel_rfa__prompt'

def setup_inputs():

    _w = (lambda a: (lambda t: t.to(torch.bfloat16) if t.is_floating_point() else t)(torch.as_tensor(a)))
    B, H, Sq, Sk, D, M = 1, 16, 2048, 2048, 256, 8
    return {
        "q": _w((lambda *s: torch.randn(*s, dtype=torch.bfloat16) * 0.1)(B, H, Sq, D)),
        "k": _w((lambda *s: torch.randn(*s, dtype=torch.bfloat16) * 1.6)(B, H, Sk, D)),
        "v": _w((lambda *s: torch.randn(*s, dtype=torch.bfloat16) * 1.6)(B, H, Sk, D)),
        "omega": _w((lambda *s: torch.randn(*s, dtype=torch.bfloat16) * 1.6)(M, D)),
    }

def reference(q, k, v, omega):
    d = q.shape[-1]
    m = omega.shape[0]
    scale = float(d) ** -0.25
    qs = q * scale
    ks = k * scale
    q_proj = torch.einsum("bhsd,md->bhsm", qs, omega)
    k_proj = torch.einsum("bhsd,md->bhsm", ks, omega)
    q_sq = 0.5 * torch.einsum("bhsd,bhsd->bhs", qs, qs)[..., None]
    k_sq = 0.5 * torch.einsum("bhsd,bhsd->bhs", ks, ks)[..., None]
    inv_sqrt_m = float(m) ** -0.5
    phi_q = torch.exp(q_proj - q_sq) * inv_sqrt_m + 1e-6
    phi_k = torch.exp(k_proj - k_sq) * inv_sqrt_m + 1e-6
    kv = torch.einsum("bhsm,bhsd->bhmd", phi_k, v)
    z  = torch.einsum("bhsm->bhm", phi_k)
    num = torch.einsum("bhqm,bhmd->bhqd", phi_q, kv)
    den = torch.einsum("bhqm,bhm->bhq", phi_q, z)[..., None] + 1e-6
    return num / den
```

```python
import sys, struct
KN = "standalone__linear_kernel_rfa__prompt_kernel"
def f2u(x): return struct.unpack('<I', struct.pack('<f', x))[0]

HEADER = """; FAVOR+ / random-feature linear attention, B=1 H=16 S=2048 D=256 M=8, bf16 (gfx950).
;   (projection, |x|^2, exponent, phi, kv, z and den are rounded to bf16 exactly where the reference rounds them)
"""
L_KQ, L_V, L_OM, L_PHI = 0, 65536, 131072, 135168
L_KVF = L_PHI + 8192
KVF_STRIDE = 1056
L_Z = L_KVF + 4*KVF_STRIDE
L_TOTAL = L_Z + 64
SLOT = 8192
WS_STAMP = 256*8192 + 65536
WS_EP = 0x300000
WS_BYTES = WS_EP + 4096
TAGM = 7
PMASK = 0x80008000
S_LOC, S_XW = 0, 1
S_ZB = 3
S_PM, S_EPA = 14, 15
S_GB = 19
S_Q, S_K, S_V, S_OM, S_OUT, S_WS = 20, 24, 28, 32, 36, 40
S_EP, S_PEND, S_SLOT = 44, 46, 47
S_W, S_H, S_J, S_T0 = 48, 49, 50, 51
S_MASK = 52
S_T1, S_T2 = 60, 61
S_HI = 62
S_C8 = 64
S_WOFF, S_WOFF2 = 65, 66
S_CNT, S_CNT2, S_CH = 67, 68, 69
S_TS = 70
S_PC = 72
S_DBG = 92
S_VM, S_VO = 96, 97
S_G0 = 98
V_KOFF, V_VOFF, V_L16, V_KRD, V_VRD, V_ONE, V_PHA, V_ONEB = 8, 16, 17, 20, 24, 26, 27, 28
V_OM, V_FR = 32, 64
V_P, V_D, V_S, V_X, V_PHI, V_PLO, V_PHI2 = 96, 100, 104, 108, 110, 112, 114
V_PUB = 116
V_AX, V_AY, V_AT = 120, 124, 128
V_TPP, V_TPK, V_TCP, V_TCK = 132, 136, 140, 144
V_M0, V_M1, V_M2, V_M3 = 148, 149, 150, 151
V_RC, V_ZB = 152, 156
V_M4, V_M5 = 158, 159
V_B = 224
V_ACC = (32, 116)
V_BF = 160
V_ZT = 200
V_DUM = 204
V_A = 224
NV = 256

class G:
    def __init__(self, **o):
        self.L = []; self.C = []; self.cur = self.L
        self.o = dict(ld='nt', st='nt', xcd=1, stamps=0, spin=1000000, nv1=4, nv2=3, depth=7, prio=1, warm=0, exact=0,
                      tries=3, bx=12, cpf=0, two=1, hq=6, hq3=0, n1=12, early=0, dlb=0, b3=0, eb=1, oord=1, preden=1, loc=1)
        self.o.update(o)
        self.nts = 0
    def a(self, s): self.cur.append(s)
    def cold(self, on): self.cur = self.C if on else self.L
    def nop(self, n):
        while n > 0:
            k = min(n, 16); self.a(f"s_nop {k-1}"); n -= k
    def stamp(self, i):
        if self.o['stamps']:
            r = S_TS + 2*i
            self.a(f"s_memrealtime s[{r}:{r+1}]")
            self.nts = max(self.nts, i+1)
    def srd(self, r, ptr, off_s, nbytes):
        if off_s is None: self.a(f"s_mov_b32 s{r}, s{ptr}\ns_mov_b32 s{r+1}, s{ptr+1}")
        else: self.a(f"s_add_u32 s{r}, s{ptr}, s{off_s}\ns_addc_u32 s{r+1}, s{ptr+1}, 0")
        self.a(f"s_mov_b32 s{r+2}, {nbytes}\ns_mov_b32 s{r+3}, 0x20000")

    def prologue(self):
        a = self.a; K = V_KOFF
        a(f".p2align 8\n.globl {KN}\n.type {KN},@function\n{KN}:")
        a(f"s_cmp_ge_u32 s2, 256\ns_cbranch_scc1 L_end")
        self.stamp(0)
        a(f"s_load_dwordx8 s[4:11], s[0:1], 0\ns_load_dwordx2 s[12:13], s[0:1], 32\ns_load_dwordx2 s[16:17], s[0:1], 48\ns_load_dwordx2 s[{S_DBG}:{S_DBG+1}], s[0:1], 40")
        if self.o['cpf']:
            a("; pull the code into L2: thread t touches byte 32*t (values unused)")
            a(f"s_getpc_b64 s[{S_PC}:{S_PC+1}]\nL_pc:\ns_mov_b32 s{S_PC+2}, L_code_end - L_pc\ns_mov_b32 s{S_PC+3}, 0x20000")
            a(f"v_lshlrev_b32 v5, 5, v0\ns_mov_b32 exec_lo, 0x11111111\ns_mov_b32 exec_hi, 0x11111111")
            a(f"buffer_load_dword v{V_DUM}, v5, s[{S_PC}:{S_PC+3}], 0 offen\ns_mov_b64 exec, -1")
        a(f"v_lshrrev_b32 v5, 6, v0\nv_bfe_u32 v1, v0, 5, 1\nv_and_b32 v2, 31, v0")
        a(f"v_readfirstlane_b32 s{S_W}, v5")
        if self.o.get('map') == 1:
            a(f"s_and_b32 s{S_T0}, s2, 63\ns_lshr_b32 s{S_CH}, s{S_T0}, 3\ns_and_b32 s{S_T0}, s{S_T0}, 7\ns_lshl_b32 s{S_T0}, s{S_T0}, 3\ns_or_b32 s{S_T0}, s{S_T0}, s{S_CH}\ns_lshl_b32 s{S_T0}, s{S_T0}, 2")
            a(f"s_lshr_b32 s{S_CH}, s2, 6\ns_xor_b32 s{S_CH}, s{S_CH}, 3\ns_or_b32 s{S_CH}, s{S_CH}, s{S_T0}")
        elif self.o.get('map') == 2:
            a(f"s_and_b32 s{S_T0}, s2, 63\ns_lshr_b32 s{S_CH}, s{S_T0}, 3\ns_and_b32 s{S_T0}, s{S_T0}, 7\ns_lshl_b32 s{S_T0}, s{S_T0}, 3\ns_or_b32 s{S_T0}, s{S_T0}, s{S_CH}\ns_lshl_b32 s{S_T0}, s{S_T0}, 2")
            a(f"s_lshr_b32 s{S_CH}, s2, 6\ns_or_b32 s{S_CH}, s{S_CH}, s{S_T0}")
        elif self.o['xcd']: a(f"s_and_b32 s{S_T0}, s2, 7\ns_lshl_b32 s{S_T0}, s{S_T0}, 5\ns_lshr_b32 s{S_CH}, s2, 3\ns_or_b32 s{S_CH}, s{S_CH}, s{S_T0}")
        else: a(f"s_mov_b32 s{S_CH}, s2")
        a(f"v_xor_b32 v5, v2, v1\nv_lshlrev_b32 v5, 4, v5\nv_lshl_add_u32 v{K}, v1, 9, v5")
        a(f"s_lshl_b32 s{S_T1}, s{S_CH}, 16\ns_lshl_b32 s{S_WOFF}, s{S_W}, 13\ns_add_u32 s{S_WOFF2}, s{S_WOFF}, 4096")
        a(f"s_mov_b32 s{S_K+2}, 65536\ns_mov_b32 s{S_K+3}, 0x20000\ns_mov_b32 m0, s{S_WOFF}")
        for u in range(1, 4): a(f"v_xor_b32 v{K+u}, {u<<5}, v{K}")
        a(f"s_mov_b32 s{S_DBG+2}, 256\ns_mov_b32 s{S_DBG+3}, 0x20000")
        a(f"s_cmp_ge_u32 s{S_W}, 4")
        a("s_waitcnt lgkmcnt(0)")
        a(f"s_getreg_b32 s{S_XW}, hwreg(HW_REG_XCC_ID, 0, 4)")
        if self.o.get('idw', 0) == 0:
            a(f"s_cbranch_scc1 L_omega")
            a(f"s_cmp_lg_u32 s{S_W}, 0\ns_cbranch_scc1 L_kload")
            a(f"s_add_u32 s{S_T0}, s{S_XW}, 1\nv_mov_b32 v6, s{S_T0}\ns_mov_b64 exec, 1\nbuffer_store_byte v6, off, s[{S_DBG}:{S_DBG+3}], s{S_CH}\ns_mov_b64 exec, -1\ns_branch L_kload")
            a("L_omega:")
        else: a(f"s_cbranch_scc0 L_kload")
        a(f"s_and_b32 s{S_T2}, s{S_W}, 3\ns_lshl_b32 s{S_T0}, s{S_T2}, 2\ns_lshl_b32 s{S_T2}, s{S_T2}, 10")
        a(f"v_lshlrev_b32 v5, 1, v1\nv_xor_b32 v5, v5, v2\nv_xor_b32 v5, s{S_T0}, v5\nv_lshlrev_b32 v5, 4, v5\nv_lshl_add_u32 v7, v1, 9, v5")
        a(f"s_add_u32 m0, s{S_T2}, {L_OM}")
        self.srd(S_OM, 10, None, 4096)
        a(f"buffer_load_dwordx4 v7, s[{S_OM}:{S_OM+3}], s{S_T2} offen lds")
        a(f"s_mov_b32 m0, s{S_WOFF}")
        if self.o.get('idw', 0) == 7:
            a("; wave 7 announces the XCD: debug byte [chunk] = xcc + 1 (plain store: only same-L2 readers need it)")
            a(f"s_cmp_lg_u32 s{S_W}, 7\ns_cbranch_scc1 L_kload")
            a(f"s_add_u32 s{S_T0}, s{S_XW}, 1\nv_mov_b32 v6, s{S_T0}\ns_mov_b64 exec, 1\nbuffer_store_byte v6, off, s[{S_DBG}:{S_DBG+3}], s{S_CH} {self.o.get('ids', '')}\ns_mov_b64 exec, -1")
        a("L_kload:")
        a(f"s_add_u32 s{S_K}, s6, s{S_T1}\ns_addc_u32 s{S_K+1}, s7, 0")
        for u in range(4): a(f"buffer_load_dwordx4 v{K + u}, s[{S_K}:{S_K+3}], s{S_WOFF} offen offset:{u*1024} {self.o['ld']} lds")
        a(f"s_mov_b32 m0, s{S_WOFF2}")
        for u in range(4, 8): a(f"v_xor_b32 v{K+u}, {u<<5}, v{K}")
        for u in range(4, 8): a(f"buffer_load_dwordx4 v{K + u}, s[{S_K}:{S_K+3}], s{S_WOFF2} offen offset:{(u-4)*1024} {self.o['ld']} lds")
        if self.o['stamps']:
            for i in range(1, 11): a(f"s_mov_b64 s[{S_TS+2*i}:{S_TS+2*i+1}], 0")
        a(f"s_lshr_b32 s{S_H}, s{S_CH}, 4\ns_and_b32 s{S_J}, s{S_CH}, 15")
        a(f"s_lshl_b32 s{S_EPA}, s{S_H}, 7\ns_add_u32 s{S_EPA}, s{S_EPA}, {WS_EP}")
        a(f"s_load_dword s{S_EP}, s[16:17], s{S_EPA}")
        a("v_and_b32 v0, 63, v0\nv_lshrrev_b32 v3, 4, v0\nv_and_b32 v4, 15, v0")
        self.srd(S_WS, 16, None, WS_BYTES)
        a(f"s_lshl_b32 s{S_SLOT}, s{S_CH}, 13\nv_lshlrev_b32 v{V_L16}, 4, v0")
        a(f"s_add_u32 s{S_XW}, s{S_XW}, 1\ns_mul_i32 s{S_XW}, s{S_XW}, 0x01010101")
        a(f"s_cmp_ge_u32 s{S_W}, 4\ns_cbranch_scc1 L_group_b")

    def q_dma(self, depth, mid=None, u0=0, u1=8):
        a = self.a
        for u in range(u0, u1):
            so = S_WOFF if u < 4 else S_WOFF2
            if u % 4 == 0 or u == u0:
                a(f"s_mov_b32 m0, s{so}")
                if not depth: a("s_nop 0")
            if depth: a(f"s_waitcnt vmcnt({depth-1})")
            if mid and u in mid: mid[u]()
            a(f"buffer_load_dwordx4 v{V_KOFF + u}, s[{S_Q}:{S_Q+3}], s{so} offen offset:{(u%4)*1024} {self.o.get('ldq', self.o['ld'])} lds")
    def v_dma(self, i0, i1, depth=None):
        a = self.a
        for i in range(i0, i1):
            a(f"s_add_u32 m0, s{S_VM}, {i*4096}\ns_add_u32 s{S_T0}, s{S_VO}, {i*16384}")
            if depth and self.o['b3']: a(f"s_cbranch_vccnz L_np{i}\ns_waitcnt vmcnt({depth-1})\nL_np{i}:")
            elif depth: a(f"s_waitcnt vmcnt({depth-1})")
            a(f"buffer_load_dwordx4 v{V_VOFF}, s[{S_V}:{S_V+3}], s{S_T0} offen {self.o.get('ldv', self.o['ld'])} lds")

    def setup(self):
        a = self.a
        for r in range(4):
            m = (1 << r) | (1 << (20+r)) | (1 << (40+r)) | (1 << (60+r))
            a(f"s_mov_b32 s{S_MASK+2*r}, {m & 0xffffffff:#x}\ns_mov_b32 s{S_MASK+2*r+1}, {m >> 32:#x}")
        a(f"s_mov_b32 s{S_HI}, 0\ns_mov_b32 s{S_HI+1}, -1\ns_mov_b32 s{S_C8}, {f2u(-0.125):#x}\ns_mov_b32 s{S_PM}, {PMASK:#x}")
        a(f"v_mov_b32 v{V_ONE}, 1.0")
        self.srd(S_Q, 4, S_T1, 65536)
        self.srd(S_OUT, 12, S_T1, 65536)
        R = V_KRD
        a(f"v_xor_b32 v5, v3, v4\nv_lshlrev_b32 v5, 4, v5\nv_lshl_add_u32 v5, v4, 9, v5\nv_add_u32 v{R}, s{S_WOFF}, v5")
        for t in range(1, 4): a(f"v_xor_b32 v{R+t}, {t<<6}, v{R}")
        a(f"v_lshrrev_b32 v5, 3, v4\nv_lshlrev_b32 v5, 9, v5\nv_lshl_add_u32 v5, v3, 7, v5\nv_and_b32 v6, 7, v4\nv_lshl_add_u32 v5, v6, 4, v5\nv_add_u32 v{V_PHA}, {L_PHI}, v5")
        a(f"v_lshlrev_b32 v5, 1, v6\nv_xor_b32 v5, v5, v3\nv_lshlrev_b32 v5, 4, v5\nv_lshl_add_u32 v5, v6, 9, v5\nv_add_u32 v{V_M0}, {L_OM}, v5")
        for t in range(1, 4): a(f"v_xor_b32 v{V_M0+t}, {t<<6}, v{V_M0}")
        a(f"v_lshlrev_b32 v5, 4, v6\nv_lshl_add_u32 v{V_M4}, v1, 7, v5")
        a(f"s_lshl_b32 s{S_T0}, s{S_W}, 8\ns_add_u32 s{S_GB}, s{S_SLOT}, s{S_T0}")

    def hash(self, idx, dst, mask):
        a = self.a
        a(f"s_mov_b32 s{S_T0}, 0x9e3779b1\nv_mul_lo_u32 v5, v{idx}, s{S_T0}\nv_add_u32 v5, s{S_EP}, v5")
        a(f"v_lshrrev_b32 v6, 16, v5\nv_xor_b32 v5, v5, v6\ns_mov_b32 s{S_T0}, 0x85ebca6b\nv_mul_lo_u32 v5, v5, s{S_T0}")
        a(f"v_lshrrev_b32 v6, 13, v5\nv_xor_b32 v5, v5, v6\ns_mov_b32 s{S_T0}, 0xc2b2ae35\nv_mul_lo_u32 v5, v5, s{S_T0}")
        a(f"v_lshrrev_b32 v6, 16, v5\nv_xor_b32 v{dst}, v5, v6")
        for k in range(1, 4): a(f"v_alignbit_b32 v{dst+k}, v{dst}, v{dst}, {3*k}")
        if mask is not None:
            for k in range(4): a(f"v_and_b32 v{dst+k}, {mask}, v{dst+k}")
    def tags(self, grp):
        a = self.a
        a(f"s_add_u32 s{S_EP}, s{S_EP}, 1")
        a(f"s_and_b32 s{S_T2}, s{S_W}, 3\ns_lshl_b32 s{S_T2}, s{S_T2}, 4\nv_lshrrev_b32 v7, 4, v{V_M4}\nv_add_u32 v7, s{S_T2}, v7")
        self.hash(7, V_TPP, None)
        if grp == 'b':
            a(f"s_and_b32 s{S_T2}, s{S_W}, 1\ns_lshl_b32 s{S_T2}, s{S_T2}, 5\nv_add_u32 v7, s{S_T2}, v2")
            self.hash(7, V_TPK, None)
            self.hash(0, V_TCP, f"s{S_PM}")
            a(f"v_lshl_add_u32 v7, v3, 2, v4")
            self.hash(7, V_TCK, None)
        else:
            self.hash(0, V_TCK, TAGM)
            a(f"v_and_b32 v7, 1, v3\nv_lshlrev_b32 v7, 2, v7\nv_lshrrev_b32 v6, 2, v4\nv_add_u32 v7, v7, v6")
            self.hash(7, V_ZT, TAGM)

    def omega_read(self):
        for t in range(8):
            r = V_OM + 4*t
            self.a(f"ds_read_b128 v[{r}:{r+3}], v{V_M0 + (t&3)} offset:{(t>>2)*256}")
    def frag_read(self):
        for t in range(8):
            r = V_FR + 4*t
            self.a(f"ds_read_b128 v[{r}:{r+3}], v{V_KRD + (t&3)} offset:{(t>>2)*256}")

    def phi(self, isq):
        a = self.a
        P, D, S, X = V_P, V_D, V_S, V_X
        for t in range(8):
            a(f"s_waitcnt lgkmcnt({7-t})")
            f = f"v[{V_FR+4*t}:{V_FR+4*t+3}]"; o = f"v[{V_OM+4*t}:{V_OM+4*t+3}]"
            cD = "0" if t == 0 else f"v[{D}:{D+3}]"; cP = "0" if t == 0 else f"v[{P}:{P+3}]"
            a(f"v_mfma_f32_16x16x32_bf16 v[{D}:{D+3}], {f}, {f}, {cD}")
            if isq: a(f"v_mfma_f32_16x16x32_bf16 v[{P}:{P+3}], {o}, {f}, {cP}")
            else:   a(f"v_mfma_f32_16x16x32_bf16 v[{P}:{P+3}], {f}, {o}, {cP}")
        self.nop(7)
        a(f"v_cndmask_b32 v{X}, 0, v{D}, s[{S_MASK}:{S_MASK+1}]")
        for r in range(1, 4): a(f"v_cndmask_b32 v{X}, v{X}, v{D+r}, s[{S_MASK+2*r}:{S_MASK+2*r+1}]")
        a(f"v_cvt_pk_bf16_f32 v{P}, 0, v{P}\nv_cvt_pk_bf16_f32 v{P+1}, 0, v{P+1}")
        if isq: a(f"v_mfma_f32_16x16x4_f32 v[{S}:{S+3}], v{V_ONE}, v{X}, 0")
        else:   a(f"v_mfma_f32_16x16x4_f32 v[{S}:{S+3}], v{X}, v{V_ONE}, 0")
        a(f"v_cvt_pk_bf16_f32 v{P+2}, 0, v{P+2}\nv_cvt_pk_bf16_f32 v{P+3}, 0, v{P+3}")
        self.nop(8)
        ns = 1 if isq else 4
        for r in range(ns): a(f"v_cvt_pk_bf16_f32 v{S+r}, 0, v{S+r}")
        for r in range(4): a(f"v_fma_f32 v{P+r}, v{S + (0 if isq else r)}, s{S_C8}, v{P+r}")
        for r in range(4): a(f"v_cvt_pk_bf16_f32 v{P+r}, 0, v{P+r}")
        for r in range(4): a(f"v_mul_f32 v{P+r}, {f2u(1.4426950408889634/4):#x}, v{P+r}")
        for r in range(4): a(f"v_exp_f32 v{P+r}, v{P+r}")
        for r in range(4): a(f"v_cvt_pk_bf16_f32 v{P+r}, 0, v{P+r}")
        for r in range(4): a(f"v_mul_f32 v{P+r}, {f2u(8**-0.5):#x}, v{P+r}")
        for r in range(4): a(f"v_cvt_pk_bf16_f32 v{P+r}, 0, v{P+r}")
        for r in range(4): a(f"v_add_f32 v{P+r}, {f2u(1e-6):#x}, v{P+r}")
        a(f"v_cvt_pk_bf16_f32 v{V_PHI}, v{P}, v{P+1}\nv_cvt_pk_bf16_f32 v{V_PHI+1}, v{P+2}, v{P+3}")
        if isq:
            a(f"v_cndmask_b32 v{V_PLO}, v{V_PHI}, 0, s[{S_HI}:{S_HI+1}]\nv_cndmask_b32 v{V_PLO+1}, v{V_PHI+1}, 0, s[{S_HI}:{S_HI+1}]")
            a(f"v_cndmask_b32 v{V_PHI2}, 0, v{V_PHI}, s[{S_HI}:{S_HI+1}]\nv_cndmask_b32 v{V_PHI2+1}, 0, v{V_PHI+1}, s[{S_HI}:{S_HI+1}]")

    def id_load(self):
        self.a(f"s_lshl_b32 s{S_T0}, s{S_H}, 4\nbuffer_load_dwordx4 v[{V_AT}:{V_AT+3}], off, s[{S_DBG}:{S_DBG+3}], s{S_T0} sc1")
    def warm_phi(self):
        if not self.o.get('wp', 0): return 0
        a = self.a
        a(f"s_mov_b32 exec_lo, 1\ns_mov_b32 exec_hi, 1\nbuffer_load_dword v{V_DUM+1}, v{V_M4}, s[{S_WS}:{S_WS+3}], s{S_GB} offen sc1\ns_mov_b64 exec, -1")
        return 1
    def id_cmp(self):
        a = self.a
        for k in range(4): a(f"v_xor_b32 v{V_AT+k}, s{S_XW}, v{V_AT+k}")
        a(f"v_or3_b32 v5, v{V_AT}, v{V_AT+1}, v{V_AT+2}\nv_or_b32 v5, v5, v{V_AT+3}\nv_cmp_ne_u32 vcc, 0, v5")
    def id_check(self, g):
        a = self.a
        a(f"s_mov_b32 s{S_LOC}, {self.o['loc']}")
        self.id_cmp()
        a(f"s_cbranch_vccnz L_id{g}\nL_idd{g}:")
        self.cold(True)
        a(f"L_id{g}:\ns_mov_b32 s{S_T2}, {self.o['tries']}\nL_idr{g}:")
        self.id_load()
        a("s_waitcnt vmcnt(0)")
        self.id_cmp()
        a(f"s_cbranch_vccz L_idd{g}\ns_sub_u32 s{S_T2}, s{S_T2}, 1\ns_cmp_lg_u32 s{S_T2}, 0\ns_cbranch_scc1 L_idr{g}")
        a(f"s_mov_b32 s{S_LOC}, 0\ns_branch L_idd{g}")
        self.cold(False)
    def msg_store(self, text, lab, was_cold=False):
        a = self.a
        if was_cold:
            a(f"s_cmp_eq_u32 s{S_LOC}, 1\ns_cbranch_scc1 L_{lab}_l\n{text} sc1\ns_branch L_{lab}_d\nL_{lab}_l:\n{text}\nL_{lab}_d:")
            return
        a(f"s_cmp_eq_u32 s{S_LOC}, 1\ns_cbranch_scc0 L_{lab}_r\n{text} {self.o.get('ps', '')}\nL_{lab}_d:")
        self.cold(True)
        a(f"L_{lab}_r:\n{text} sc1\ns_branch L_{lab}_d")
        self.cold(False)

    def phi_publish(self, g):
        a = self.a; M = V_PUB
        a(f"v_mov_b32 v{M+2}, v{V_PHI}\nv_mov_b32 v{M+3}, v{V_PHI+1}")
        self.id_check(g)
        a(f"v_permlane16_swap_b32 v{V_PHI}, v{M+2}\nv_permlane16_swap_b32 v{V_PHI+1}, v{M+3}")
        a(f"v_bfi_b32 v{M}, s{S_PM}, v{V_TPP}, v{V_PHI}\nv_bfi_b32 v{M+1}, s{S_PM}, v{V_TPP+1}, v{V_PHI+1}")
        a(f"v_bfi_b32 v{M+2}, s{S_PM}, v{V_TPP+2}, v{M+2}\nv_bfi_b32 v{M+3}, s{S_PM}, v{V_TPP+3}, v{M+3}")
        a(f"s_mov_b32 exec_lo, 0xff\ns_mov_b32 exec_hi, 0xff")
        self.msg_store(f"buffer_store_dwordx4 v[{M}:{M+3}], v{V_M4}, s[{S_WS}:{S_WS+3}], s{S_GB} offen", f"pp{g}")
        a(f"s_mov_b64 exec, -1")

    def out_addrs(self):
        a = self.a
        a(f"v_add_u32 v{V_M2}, {L_KVF}, v{V_L16}")
        a(f"v_lshlrev_b32 v5, 11, v3\nv_lshl_add_u32 v{V_M3}, v4, 4, v5")
        a(f"v_and_b32 v5, 1, v3\nv_lshlrev_b32 v5, 3, v5\nv_add_u32 v{V_M5}, {L_Z}, v5")

    def untag(self, r, n, tag_v):
        for k in range(n): self.a(f"v_xor_b32 v{r+k}, v{tag_v + (k&3)}, v{r+k}")
    def orred(self, dst, r, n, acc=None):
        a = self.a; k = 0
        if acc is None: a(f"v_or3_b32 v{dst}, v{r}, v{r+1}, v{r+2}"); k = 3
        while k + 1 < n:
            a(f"v_or3_b32 v{dst}, v{dst}, v{r+k}, v{r+k+1}"); k += 2
        if k < n: a(f"v_or_b32 v{dst}, v{dst}, v{r+k}")

    def den(self, zb):
        a = self.a; RC = V_RC
        a(f"v_mfma_f32_16x16x16_bf16 v[{RC}:{RC+3}], v[{V_PLO}:{V_PLO+1}], v[{zb}:{zb+1}], 0")
    def den_fin(self):
        a = self.a; RC = V_RC
        for r in range(4): a(f"v_cvt_pk_bf16_f32 v{RC+r}, 0, v{RC+r}")
        for r in range(4): a(f"v_add_f32 v{RC+r}, {f2u(1e-6):#x}, v{RC+r}")
        for r in range(4): a(f"v_cvt_pk_bf16_f32 v{RC+r}, 0, v{RC+r}")
        for r in range(4): a(f"v_mul_f32 v{RC+r}, {f2u(0.25):#x}, v{RC+r}")
        for r in range(4): a(f"v_rcp_f32 v{RC+r}, v{RC+r}")
        for r in range(4): a(f"v_mul_f32 v{RC+r}, {f2u(0.25):#x}, v{RC+r}")

    def output(self):
        a = self.a
        B, RC, O = V_B, V_RC, V_FR
        def mf(c, j):
            acc = V_ACC[c]; b = B + 2*j; ph = V_PLO if c == 0 else V_PHI2
            a(f"v_mfma_f32_16x16x16_bf16 v[{acc+4*j}:{acc+4*j+3}], v[{ph}:{ph+1}], v[{b}:{b+1}], 0")
        for j in range(8):
            if j % 2 == 0: a(f"s_waitcnt lgkmcnt({3 - j//2})")
            mf(0, j)
        if self.o['oord'] == 2:
            for j in range(8): mf(1, j)
            for rp in range(2):
                for c in range(2):
                    acc = V_ACC[c]
                    for j in range(8):
                        x = acc + 4*j + 2*rp
                        if self.o['exact']:
                            a(f"v_cvt_pk_bf16_f32 v{x}, 0, v{x}\nv_cvt_pk_bf16_f32 v{x+1}, 0, v{x+1}")
                        a(f"v_pk_mul_f32 v[{x}:{x+1}], v[{x}:{x+1}], v[{RC+2*rp}:{RC+2*rp+1}]")
                for r in (2*rp, 2*rp+1):
                    for c in range(2):
                        acc = V_ACC[c]; o = O + 16*c + 4*r
                        for jp in range(4):
                            a(f"v_cvt_pk_bf16_f32 v{o+jp}, v{acc+8*jp+r}, v{acc+8*jp+4+r}")
                        a(f"buffer_store_dwordx4 v[{o}:{o+3}], v{V_M3}, s[{S_OUT}:{S_OUT+3}], s{S_WOFF} offen offset:{r*512 + c*256} {self.stp(c*4 + r)}")
            return
        nxt = 0
        for c in range(2):
            acc = V_ACC[c]
            for rp in range(2):
                for j in range(8):
                    if c == 0 and (j % 2 == 0):
                        mf(1, nxt); nxt += 1
                    x = acc + 4*j + 2*rp
                    if self.o['exact']:
                        a(f"v_cvt_pk_bf16_f32 v{x}, 0, v{x}\nv_cvt_pk_bf16_f32 v{x+1}, 0, v{x+1}")
                    a(f"v_pk_mul_f32 v[{x}:{x+1}], v[{x}:{x+1}], v[{RC+2*rp}:{RC+2*rp+1}]")
                for r in (2*rp, 2*rp+1):
                    o = O + 16*c + 4*r
                    for jp in range(4):
                        a(f"v_cvt_pk_bf16_f32 v{o+jp}, v{acc+8*jp+r}, v{acc+8*jp+4+r}")
                    a(f"buffer_store_dwordx4 v[{o}:{o+3}], v{V_M3}, s[{S_OUT}:{S_OUT+3}], s{S_WOFF} offen offset:{r*512 + c*256} {self.stp(c*4 + r)}")
    def stp(self, i):
        if i >= 8 - self.o.get('lsc1', 0): return self.o.get('lst', 'sc1')
        return self.o['st'] if i >= self.o.get('nsc1', 0) else 'sc1'
    def kv_read(self):
        for u in range(4):
            self.a(f"ds_read_b128 v[{V_B+4*u}:{V_B+4*u+3}], v{V_M2} offset:{u*KVF_STRIDE}")

    def group_a(self):
        a = self.a
        nv1, nv2, depth, bx = self.o['nv1'], self.o['nv2'], self.o['depth'], self.o['bx']
        if self.o['warm']:
            a("; pull this chunk's message lines into L2 (values unused)")
            a(f"s_lshl_b32 s{S_T0}, s{S_W}, 10\ns_add_u32 s{S_T0}, s{S_T0}, s{S_SLOT}\ns_add_u32 s{S_T2}, s{S_SLOT}, 4096")
            a(f"buffer_load_dwordx4 v[{V_DUM+4}:{V_DUM+7}], v{V_L16}, s[{S_WS}:{S_WS+3}], s{S_T0} offen sc1")
            a(f"s_mov_b64 exec, 0xff\nbuffer_load_dwordx4 v[{V_DUM+8}:{V_DUM+11}], v{V_L16}, s[{S_WS}:{S_WS+3}], s{S_T2} offen sc1\ns_mov_b64 exec, -1")
        a(f"s_lshr_b32 s{S_T0}, s{S_CH}, 2\ns_lshl_b32 s{S_T0}, s{S_T0}, 18\ns_and_b32 s{S_T2}, s{S_CH}, 3\ns_lshl_b32 s{S_T2}, s{S_T2}, 7\ns_add_u32 s{S_T0}, s{S_T0}, s{S_T2}")
        self.srd(S_V, 8, S_T0, 262144 - 384)
        a(f"s_lshl_b32 s{S_VM}, s{S_W}, 10\ns_add_u32 s{S_VM}, s{S_VM}, {L_V}\ns_lshl_b32 s{S_VO}, s{S_W}, 12")
        a(f"s_and_b32 s{S_T0}, s{S_W}, 1\ns_lshl_b32 s{S_T0}, s{S_T0}, 2")
        a(f"v_and_b32 v5, 1, v3\nv_lshlrev_b32 v5, 1, v5\nv_or_b32 v5, s{S_T0}, v5\nv_and_b32 v6, 7, v0\nv_xor_b32 v5, v5, v6\nv_lshlrev_b32 v5, 4, v5\nv_lshrrev_b32 v6, 3, v0\nv_lshl_add_u32 v{V_VOFF}, v6, 9, v5")
        self.setup()
        tlb = self.o.get('tlb', 0); ntlb = 0
        if tlb:
            a("; touch the buffers used later (address translation only, values unused)")
            a("s_mov_b64 exec, 1")
            for bit, srd, so in ((1, S_V, "0"), (2, S_Q, f"s{S_WOFF}"), (4, S_OUT, f"s{S_WOFF}"), (8, S_WS, f"s{S_EPA}")):
                if tlb & bit:
                    a(f"buffer_load_dword v{V_DUM+12+ntlb}, off, s[{srd}:{srd+3}], {so} sc1 nt"); ntlb += 1
            a("s_mov_b64 exec, -1")
        a("s_waitcnt lgkmcnt(0)")
        self.tags('a')
        a("s_barrier")
        self.omega_read()
        ntlb += self.warm_phi()
        self.id_load()
        self.v_dma(0, nv1)
        self.stamp(1)
        a(f"s_waitcnt vmcnt({nv1 + 1 + 2*self.o['warm'] + ntlb}) lgkmcnt(0)")
        self.frag_read()
        self.phi(False)
        self.v_dma(nv1, nv1 + nv2)
        a(f"s_waitcnt vmcnt({nv1 + nv2})")
        self.phi_publish('a')
        self.stamp(2)
        if self.o['b3']: a(f"s_and_b32 s{S_T0}, s{S_J}, 3\ns_cmp_eq_u32 s{S_T0}, 3\ns_cselect_b64 vcc, -1, 0")
        self.v_dma(nv1 + nv2, bx, depth)
        a("s_barrier")
        self.v_dma(bx, 16, depth)
        two = self.o['two']
        n1 = self.o['n1']
        if two:
            u = n1 + depth - 1 - 16
            assert 0 <= u < 8
            mids = {u: lambda: a("s_barrier")}
            if self.o.get('eb2', 2) == 1:
                def b2():
                    self.stamp(3)
                    a("s_barrier")
                assert depth - 1 < 8 and depth - 1 != u
                mids[depth - 1] = b2
            self.q_dma(depth, mids)
        else: self.q_dma(depth)
        if self.o.get('eb2', 2) == 2:
            a(f"s_waitcnt vmcnt(8)")
            self.stamp(3)
            a("s_barrier")
        self.out_addrs()
        a(f"s_lshl_b32 s{S_T0}, s{S_H}, 4\ns_add_u32 s{S_T0}, s{S_T0}, s{S_W}\ns_lshl_b32 s{S_G0}, s{S_T0}, 13\ns_add_u32 s{S_G0}, s{S_G0}, 2048")
        for k in range(1, 4): a(f"s_add_u32 s{S_G0+k}, s{S_G0}, {k*4*SLOT}")
        a(f"s_lshl_b32 s{S_T0}, s{S_H}, 4\ns_and_b32 s{S_T2}, s{S_J}, 3\ns_add_u32 s{S_T0}, s{S_T0}, s{S_T2}\ns_lshl_b32 s{S_ZB}, s{S_T0}, 13\ns_add_u32 s{S_ZB}, s{S_ZB}, 4096")
        a(f"v_and_b32 v5, 3, v0\nv_lshlrev_b32 v5, 15, v5\nv_lshrrev_b32 v6, 2, v4\nv_lshl_add_u32 v5, v6, 4, v5\nv_and_b32 v6, 1, v3\nv_lshl_add_u32 v{V_M0}, v6, 6, v5")
        a(f"s_lshr_b32 s{S_T0}, s{S_W}, 1\ns_lshl_b32 s{S_T0}, s{S_T0}, 9\ns_and_b32 s{S_T2}, s{S_W}, 1\ns_lshl_b32 s{S_T2}, s{S_T2}, 7\ns_add_u32 s{S_T0}, s{S_T0}, s{S_T2}\ns_add_u32 s{S_T0}, s{S_T0}, {L_KVF}")
        a(f"v_bfe_u32 v5, v0, 1, 2\nv_mul_u32_u24 v5, {KVF_STRIDE}, v5\nv_lshl_add_u32 v5, v6, 8, v5\nv_lshl_add_u32 v5, v1, 5, v5")
        a(f"v_bfe_u32 v6, v0, 3, 1\nv_lshl_add_u32 v5, v6, 4, v5\nv_and_b32 v6, 1, v0\nv_lshl_add_u32 v5, v6, 3, v5\nv_add_u32 v{V_M1}, s{S_T0}, v5")
        if self.o.get('eb2', 2) == 0:
            a(f"s_waitcnt vmcnt(8)")
            self.stamp(3)
            a("s_barrier")
        if self.o.get('prioa'): a(f"s_setprio {self.o['prioa']}")
        a("s_waitcnt vmcnt(0)")
        self.stamp(4)
        if not self.o['early']:
            self.frag_read()
            self.phi(True)
        self.stamp(5)
        if self.o['dlb']: a(f"s_sleep {self.o['dlb']}")
        Gs, ZG = V_BF, V_BF + 32
        def ld(k):
            if k == 4: a(f"buffer_load_dwordx4 v[{ZG}:{ZG+3}], v{V_M0}, s[{S_WS}:{S_WS+3}], s{S_ZB} offen sc1"); return
            for hf in range(2):
                r = Gs + 8*k + 4*hf
                a(f"buffer_load_dwordx4 v[{r}:{r+3}], v{V_L16}, s[{S_WS}:{S_WS+3}], s{S_G0+k} offen offset:{hf*1024} sc1")
        grp = [(Gs + 8*k, 8, V_TCK) for k in range(4)] + [(ZG, 4, V_ZT)]
        for k in range(5): ld(k)
        if self.o['hq']: a("s_barrier")
        if self.o['early']:
            self.frag_read()
            self.phi(True)
        if self.o['stamps']: a(f"s_mov_b32 s{S_CNT2}, 1")
        for k, (r, n, t) in enumerate(grp):
            a(f"s_waitcnt vmcnt({max(0, 7 - 2*k)})")
            self.untag(r, n, t)
            self.orred(5, r, n, acc=(k > 0) or None)
        a(f"v_and_b32 v5, {TAGM}, v5\nv_cmp_ne_u32 vcc, 0, v5\ns_cbranch_vccnz L_gb_retry\nL_gb_done:")
        self.cold(True)
        a(f"L_gb_retry:\ns_mov_b32 s{S_CNT2}, 1\nL_gb_loop:\ns_mov_b32 s{S_PEND}, 0")
        for k, (r, n, t) in enumerate(grp):
            self.orred(5, r, n)
            a(f"v_and_b32 v5, {TAGM}, v5\nv_cmp_ne_u32 vcc, 0, v5\ns_cbranch_vccz L_gb_c{k}\ns_bitset1_b32 s{S_PEND}, {k}")
            ld(k)
            a(f"L_gb_c{k}:")
        a(f"s_cmp_eq_u32 s{S_PEND}, 0\ns_cbranch_scc1 L_gb_done")
        a(f"s_add_u32 s{S_CNT2}, s{S_CNT2}, 1\ns_waitcnt vmcnt(0)")
        for k, (r, n, t) in enumerate(grp):
            a(f"s_bitcmp1_b32 s{S_PEND}, {k}\ns_cbranch_scc0 L_gb_u{k}")
            self.untag(r, n, t)
            a(f"L_gb_u{k}:")
        a(f"s_cmp_lt_u32 s{S_CNT2}, {self.o['spin']}\ns_cbranch_scc1 L_gb_loop\ns_branch L_gb_done")
        self.cold(False)
        self.stamp(6)
        for x, y in ((0, 8), (16, 24), (0, 16)):
            for k in range(0, 8, 2):
                a(f"v_pk_add_f32 v[{Gs+x+k}:{Gs+x+k+1}], v[{Gs+x+k}:{Gs+x+k+1}], v[{Gs+y+k}:{Gs+y+k+1}]")
        for k in range(4): a(f"v_cvt_pk_bf16_f32 v{Gs+k}, v{Gs+2*k}, v{Gs+2*k+1}")
        a(f"ds_write_b64 v{V_M1}, v[{Gs}:{Gs+1}]\nds_write_b64 v{V_M1}, v[{Gs+2}:{Gs+3}] offset:64")
        for perm in ("[1,0,3,2]", "[2,3,0,1]"):
            for r in range(4): a(f"v_add_f32_dpp v{ZG+r}, v{ZG+r}, v{ZG+r} quad_perm:{perm} row_mask:0xf bank_mask:0xf")
        a(f"v_cvt_pk_bf16_f32 v{ZG}, v{ZG}, v{ZG+1}\nv_cvt_pk_bf16_f32 v{ZG+1}, v{ZG+2}, v{ZG+3}")
        a(f"ds_write_b64 v{V_M5}, v[{ZG}:{ZG+1}]")
        a(f"s_or_b32 s{S_T0}, s{S_J}, s{S_W}")
        self.den(ZG)
        a("s_waitcnt lgkmcnt(0)")
        self.stamp(7)
        a("s_barrier")
        self.kv_read()
        a(f"s_cbranch_scc0 L_bump\nL_bumped:")
        if self.o.get('clean', 0) & 1:
            a(f"s_and_b32 s{S_T0}, s{S_W}, 1\ns_lshl_b32 s{S_T0}, s{S_T0}, 10\ns_add_u32 s{S_T0}, s{S_T0}, s{S_SLOT}\ns_cmp_ge_u32 s{S_W}, 2\ns_cbranch_scc1 L_nocl")
            a(f"buffer_store_dwordx4 v[{V_KOFF}:{V_KOFF+3}], v{V_L16}, s[{S_WS}:{S_WS+3}], s{S_T0} offen sc1\nL_nocl:")
        self.cold(True)
        a("L_bump:\n; all 16 chunks of the head have been heard from, so all of them have read the old epoch")
        a(f"v_mov_b32 v6, s{S_EP}\ns_mov_b64 exec, 1\nbuffer_store_dword v6, off, s[{S_WS}:{S_WS+3}], s{S_EPA} sc1\ns_mov_b64 exec, -1\ns_branch L_bumped")
        self.cold(False)
        self.nop(1)

    def group_b(self):
        a = self.a
        a("L_group_b:")
        if self.o['prio']: a(f"s_setprio {self.o['prio']}")
        a("s_waitcnt vmcnt(8) lgkmcnt(0)\ns_barrier                                  ; B0")
        self.id_load()
        self.setup()
        nwp = self.warm_phi()
        self.omega_read()
        a(f"s_and_b32 s{S_T0}, s{S_W}, 3")
        a(f"v_bfe_u32 v5, v0, 3, 2\nv_xor_b32 v5, s{S_T0}, v5\nv_lshlrev_b32 v5, 5, v5\nv_lshl_add_u32 v5, v3, 10, v5\nv_bfe_u32 v6, v0, 2, 2\nv_lshl_add_u32 v5, v6, 7, v5")
        a(f"v_and_b32 v6, 3, v0\nv_lshl_add_u32 v5, v6, 3, v5\nv_add_u32 v{V_VRD}, {L_V}, v5")
        a(f"s_and_b32 s{S_T2}, s{S_CH}, 0xfc\ns_add_u32 s{S_T2}, s{S_T2}, s{S_T0}\ns_lshl_b32 s{S_VM}, s{S_T2}, 13")
        a(f"s_lshl_b32 s{S_T2}, s{S_T0}, 11\ns_add_u32 s{S_T2}, s{S_T2}, {L_PHI}\nv_add_u32 v{V_VRD+1}, s{S_T2}, v{V_L16}")
        a(f"s_lshl_b32 s{S_T0}, s{S_T0}, 9\ns_add_u32 s{S_VO}, s{S_SLOT}, s{S_T0}\ns_add_u32 s{S_VO}, s{S_VO}, 2048")
        self.tags('b')
        a(f"s_waitcnt vmcnt({1 + nwp}) lgkmcnt(0)")
        self.stamp(1)
        self.frag_read()
        self.out_addrs()
        for r in range(4): a(f"v_mov_b32 v{V_ONEB+r}, 0x3f803f80")
        a(f"v_lshlrev_b32 v5, 6, v3\nv_lshl_add_u32 v{V_M0}, v4, 4, v5")
        self.phi(False)
        a("s_waitcnt vmcnt(0)")
        self.phi_publish('b')
        self.stamp(2)
        a("s_barrier                                  ; B1")
        if self.o.get('wk', 0):
            a("; pull the lines of this wave's kv message (and the z line) into L2 before they are written (values unused)")
            a(f"s_mov_b32 exec_hi, 0\nbuffer_load_dwordx4 v[{V_FR+8}:{V_FR+11}], v{V_L16}, s[{S_WS}:{S_WS+3}], s{S_VO} offen sc1")
            a(f"s_add_u32 s{S_T0}, s{S_SLOT}, 4096\ns_mov_b64 exec, 1\nbuffer_load_dword v{V_FR+12}, off, s[{S_WS}:{S_WS+3}], s{S_T0} sc1\ns_mov_b64 exec, -1")
        a(f"s_mov_b32 s{S_CNT}, 0\nL_ga:")
        for hf in range(2):
            r = V_FR + 4*hf
            a(f"buffer_load_dwordx4 v[{r}:{r+3}], v{V_L16}, s[{S_WS}:{S_WS+3}], s{S_VM} offen offset:{hf*1024} sc1")
        a(f"s_add_u32 s{S_CNT}, s{S_CNT}, 1\ns_cmp_ge_u32 s{S_CNT}, {self.o['spin']}\ns_waitcnt vmcnt(0)")
        self.untag(V_FR, 8, V_TCP)
        self.orred(5, V_FR, 8)
        a(f"v_and_b32 v5, s{S_PM}, v5\nv_cmp_ne_u32 vcc, 0, v5\ns_cbranch_scc1 L_ga_done\ns_cbranch_vccnz L_ga\nL_ga_done:")
        a(f"ds_write_b128 v{V_VRD+1}, v[{V_FR}:{V_FR+3}]\nds_write_b128 v{V_VRD+1}, v[{V_FR+4}:{V_FR+7}] offset:1024")
        a("s_waitcnt lgkmcnt(0)")
        self.stamp(3)
        def rda(p2): a(f"ds_read_b128 v[{V_A+4*p2}:{V_A+4*p2+3}], v{V_PHA} offset:{p2*1024}")
        def rdv(p2):
            for e in range(2):
                p = 2*p2 + e
                for hf in range(2):
                    r = V_BF + 4*p + 2*hf
                    a(f"ds_read_b64_tr_b16 v[{r}:{r+1}], v{V_VRD} offset:{p*4096 + hf*512}")
        def mm(p2, e):
            acc = V_AY if e else V_AX
            c = "0" if p2 == 0 else f"v[{acc}:{acc+3}]"
            r = V_BF + 8*p2 + 4*e
            a(f"v_mfma_f32_16x16x32_bf16 v[{acc}:{acc+3}], v[{V_A+4*p2}:{V_A+4*p2+3}], v[{r}:{r+3}], {c}")
        def mz(p2):
            c = "0" if p2 == 0 else f"v[{V_PUB}:{V_PUB+3}]"
            a(f"v_mfma_f32_16x16x32_bf16 v[{V_PUB}:{V_PUB+3}], v[{V_A+4*p2}:{V_A+4*p2+3}], v[{V_ONEB}:{V_ONEB+3}], {c}")
        def stage(p0, p1):
            for p2 in range(p0, min(p0+3, p1)): rda(p2); rdv(p2)
            for p2 in range(p0, p1):
                left = min(p2 + 3, p1) - p2 - 1
                a(f"s_waitcnt lgkmcnt({5*left + 2})"); mz(p2); mm(p2, 0)
                a(f"s_waitcnt lgkmcnt({5*left})"); mm(p2, 1)
                if p2 + 3 < p1: rda(p2 + 3); rdv(p2 + 3)
        if self.o['two']:
            a("s_barrier                                  ; B2a")
            h = self.o['n1']//2
            stage(0, h)
            for p2 in range(h, 8): rda(p2)
            a("s_waitcnt lgkmcnt(0)")
            for p2 in range(h, 8): mz(p2)
            a("s_barrier                                  ; B2")
            for p2 in range(h, 8): rdv(p2)
            for p2 in range(h, 8):
                for e in range(2):
                    a(f"s_waitcnt lgkmcnt({4*(8-h) - 2 - 4*(p2-h) - 2*e})"); mm(p2, e)
        else:
            a("s_barrier                                  ; B2")
            stage(0, 8)
        self.nop(8)
        for r in range(4): a(f"v_permlane32_swap_b32 v{V_AY+r}, v{V_AT+r}")
        a(f"v_pk_add_f32 v[{V_AX}:{V_AX+1}], v[{V_AX}:{V_AX+1}], v[{V_AT}:{V_AT+1}]\nv_pk_add_f32 v[{V_AX+2}:{V_AX+3}], v[{V_AX+2}:{V_AX+3}], v[{V_AT+2}:{V_AT+3}]")
        for r in range(4): a(f"v_bfi_b32 v{V_AX+r}, {TAGM}, v{V_TPK+r}, v{V_AX+r}")
        a(f"s_mov_b32 exec_hi, 0")
        self.msg_store(f"buffer_store_dwordx4 v[{V_AX}:{V_AX+3}], v{V_L16}, s[{S_WS}:{S_WS+3}], s{S_VO} offen", "kp")
        a(f"s_mov_b32 exec_hi, -1")
        if self.o.get('clean', 0) & 2:
            for r in range(4): a(f"v_mov_b32 v{V_A+r}, v{V_AX+r}")
        a(f"s_cmp_lg_u32 s{S_W}, 7\ns_cbranch_scc1 L_noz")
        Z = V_PUB
        for r in range(4): a(f"v_permlane32_swap_b32 v{Z+r}, v{V_AT+r}")
        a(f"v_pk_add_f32 v[{Z}:{Z+1}], v[{Z}:{Z+1}], v[{V_AT}:{V_AT+1}]\nv_pk_add_f32 v[{Z+2}:{Z+3}], v[{Z+2}:{Z+3}], v[{V_AT+2}:{V_AT+3}]")
        for r in range(4): a(f"v_bfi_b32 v{Z+r}, {TAGM}, v{V_TCK+r}, v{Z+r}")
        a(f"s_add_u32 s{S_T0}, s{S_SLOT}, 4096\ns_mov_b64 exec, 0xf000f")
        self.msg_store(f"buffer_store_dwordx4 v[{Z}:{Z+3}], v{V_M0}, s[{S_WS}:{S_WS+3}], s{S_T0} offen", "zp")
        a(f"s_mov_b64 exec, -1\nL_noz:")
        self.stamp(4)
        if self.o['prio']: a(f"s_setprio 0")
        if self.o['hq'] and 'hq3' in self.o:
            hq, h3 = self.o['hq'], self.o['hq3']
            self.q_dma(None, None, 0, 8 - hq)
            a(f"s_and_b32 s{S_T0}, s{S_J}, 3\ns_cmp_eq_u32 s{S_T0}, 3\ns_cbranch_scc1 L_q3")
            a("s_barrier                                  ; B2c")
            self.q_dma(None, None, 8 - hq, 8)
            a("s_branch L_q3d\nL_q3:")
            self.q_dma(None, None, 8 - hq, 8 - h3)
            a("s_barrier                                  ; B2c")
            self.q_dma(None, None, 8 - h3, 8)
            a("L_q3d:")
        elif self.o['hq']:
            self.q_dma(None, None, 0, 8 - self.o['hq'])
            a("s_barrier                                  ; B2c")
            self.q_dma(None, None, 8 - self.o['hq'], 8)
        else: self.q_dma(None)
        if self.o['eb']: a("s_barrier                                  ; B3")
        self.stamp(5)
        pre = self.o['eb'] and self.o.get('prekv', 1)
        if pre:
            a(f"ds_read_b64 v[{V_ZB}:{V_ZB+1}], v{V_M5}")
            self.kv_read()
        if self.o.get('priob'): a(f"s_setprio {self.o['priob']}")
        a("s_waitcnt vmcnt(0)")
        self.stamp(6)
        self.frag_read()
        self.phi(True)
        self.stamp(7)
        if not self.o['eb']: a("s_barrier                                  ; B3")
        if not pre:
            a(f"ds_read_b64 v[{V_ZB}:{V_ZB+1}], v{V_M5}")
            self.kv_read()
            a("s_waitcnt lgkmcnt(4)")
        self.den(V_ZB)
        self.nop(7)
        a("s_branch L_out")

    def dump_stamps(self):
        if not self.o['stamps']: return
        a = self.a
        a("s_waitcnt vmcnt(0)")
        self.stamp(10)
        a("s_waitcnt lgkmcnt(0)")
        if 'enc' in self.o:
            i, j, g = self.o['enc'], self.o.get('enc0', 0), self.o.get('encg', 'a')
            a(f"s_sub_u32 s{S_T0}, s{S_TS+2*i}, s{S_TS+2*j}\ns_mul_i32 s{S_T0}, s{S_T0}, 50")
            a(f"s_cmp_{'lt' if g == 'a' else 'ge'}_u32 s{S_W}, 4\ns_cselect_b32 s{S_T0}, s{S_T0}, 0")
            a(f"s_add_u32 s{S_T0}, s{S_T0}, 3000\ns_add_u32 s{S_T1}, s{S_TS}, s{S_T0}")
            a(f"L_padl:\ns_sleep 2\ns_memrealtime s[4:5]\ns_waitcnt lgkmcnt(0)\ns_sub_u32 s4, s4, s{S_T1}\ns_cmp_lt_i32 s4, 0\ns_cbranch_scc1 L_padl")
            return
        a(f"s_lshl_b32 s{S_T0}, s2, 3\ns_add_u32 s{S_T0}, s{S_T0}, s{S_W}\ns_lshl_b32 s{S_T0}, s{S_T0}, 7\ns_add_u32 s{S_T0}, s{S_T0}, {WS_STAMP}")
        a("v_mov_b32 v5, 0\ns_mov_b64 exec, 1")
        a(f"s_cmp_lt_u32 s{S_W}, 4\ns_cselect_b32 s{S_CNT}, s{S_CNT2}, s{S_CNT}")
        a(f"v_mov_b32 v10, s{S_CNT}\nv_mov_b32 v11, 0\nbuffer_store_dwordx2 v[10:11], v5, s[{S_WS}:{S_WS+3}], s{S_T0} offen offset:112")
        for i in range(self.nts):
            a(f"v_mov_b32 v6, s{S_TS+2*i}\nv_mov_b32 v7, s{S_TS+2*i+1}")
            a(f"buffer_store_dwordx2 v[6:7], v5, s[{S_WS}:{S_WS+3}], s{S_T0} offen offset:{8*i}\ns_nop 1")

    def build(self):
        a = self.a
        a(HEADER.rstrip())
        a(f"; @launch grid=(256,1,1) block=(512,1,1) lds={L_TOTAL}")
        a('.amdgcn_target "amdgcn-amd-amdhsa--gfx950"\n.text')
        self.prologue()
        self.group_a()
        a("L_out:")
        self.stamp(8)
        self.den_fin()
        self.output()
        if self.o.get('clean', 0) & 2:
            a(f"s_cmp_lt_u32 s{S_W}, 4\ns_cbranch_scc1 L_nocl2\ns_mov_b32 exec_hi, 0")
            a(f"buffer_store_dwordx4 v[{V_A}:{V_A+3}], v{V_L16}, s[{S_WS}:{S_WS+3}], s{S_VO} offen sc1\ns_mov_b32 exec_hi, -1\nL_nocl2:")
        self.stamp(9)
        self.dump_stamps()
        a(f"L_end:\ns_endpgm")
        self.group_b()
        self.L += self.C
        a("L_code_end:")
        a(".fill 64, 4, 0xbf810000")
        a(f""".section .rodata,"a"
.p2align 6
.amdhsa_kernel {KN}
  .amdhsa_next_free_vgpr {NV}
  .amdhsa_next_free_sgpr 102
  .amdhsa_accum_offset {NV}
  .amdhsa_group_segment_fixed_size 0
  .amdhsa_kernarg_size 56
  .amdhsa_user_sgpr_count 2
  .amdhsa_user_sgpr_kernarg_segment_ptr 1
  .amdhsa_system_sgpr_workgroup_id_x 1
  .amdhsa_float_denorm_mode_32 3
.end_amdhsa_kernel""")
        return "\n".join(self.L) + "\n"

def parse(spec):
    o = {}
    for kv in spec.split(','):
        if '=' in kv:
            k, v = kv.split('=')
            try: v = int(v)
            except ValueError: v = v.replace('+', ' ').replace('none', '')
            o[k] = v
    return o
if __name__ == '__main__':
    import os
    os.makedirs('k', exist_ok=True)
    out = []
    for spec in sys.argv[1:]:
        fn = 'k/v8_' + spec.replace(',', '_').replace('=', '') + '.s'
        open(fn, 'w').write(G(**parse(spec)).build())
        out.append(fn)
    print(" ".join(out))
```
